```python
import torch

def _softmax(x, axis=-1):
    return torch.softmax(x, dim=axis)
def _gelu(x):
    return torch.nn.functional.gelu(x, approximate="tanh")
def _silu(x):
    return torch.nn.functional.silu(x)
def _sigmoid(x):
    return torch.sigmoid(x)
def _layernorm(x, axis=-1, eps=1e-5):
    m = x.mean(dim=axis, keepdim=True)
    v = x.var(dim=axis, keepdim=True, unbiased=False)
    return (x - m) / torch.sqrt(v + eps)
def _scatter_add(tgt, idx, src, axis=0):
    return tgt.clone().index_add_(axis, idx, src)
def _segment_sum(src, seg, n):
    out = torch.zeros((n,) + src.shape[1:], dtype=src.dtype)
    return out.index_add_(0, seg, src)
def _pad(x, pw):
    flat = tuple(v for pair in reversed(pw) for v in pair)
    return torch.nn.functional.pad(x, flat)

kernel_name = 'parallel_sum__ssm_conv_h3__mixer_channel_mlp__prompt'

def setup_inputs():

    _w = (lambda a: (lambda t: t.to(torch.bfloat16) if t.is_floating_point() else t)(torch.as_tensor(a)))
    def _A_setup():
        B, S, D = 1, 2048, 512
        ks = 4
        return {
            "q": _w((lambda *s: torch.randn(*s, dtype=torch.bfloat16) * 0.05)(B, S, D)),
            "k": _w((lambda *s: torch.randn(*s, dtype=torch.bfloat16) * 0.2)(B, S, D)),
            "v": _w((lambda *s: torch.randn(*s, dtype=torch.bfloat16) * 0.2)(B, S, D)),
            "shift_k": _w((lambda *s: torch.randn(*s, dtype=torch.bfloat16) * 0.2)(D, ks) * 0.5),
            "ssm_k": _w((lambda *s: torch.randn(*s, dtype=torch.bfloat16) * 0.8)(D, S) * (1.0 / S ** 0.5)),
            "ssm_D": _w((lambda *s: torch.randn(*s, dtype=torch.bfloat16) * 0.2)(D)),
        }
    _A_in = _A_setup()

    def _B_setup():
        B, S, D, F = 1, 2048, 512, 1792
        return {
            "x": _w((lambda *s: torch.randn(*s, dtype=torch.bfloat16) * 0.05)(B, S, D)),
            "w1": _w((lambda *s: torch.randn(*s, dtype=torch.bfloat16) * 0.8)(D, F) * (D ** -0.5)),
            "b1": _w((lambda *s: torch.randn(*s, dtype=torch.bfloat16) * 0.4)(F)),
            "w2": _w((lambda *s: torch.randn(*s, dtype=torch.bfloat16) * 0.05)(F, D) * (F ** -0.5)),
            "b2": _w((lambda *s: torch.randn(*s, dtype=torch.bfloat16) * 0.05)(D)),
        }
    _B_in = _B_setup()

    return {
        "A_q": _A_in["q"],
        "A_k": _A_in["k"],
        "A_v": _A_in["v"],
        "A_shift_k": _A_in["shift_k"],
        "A_ssm_k": _A_in["ssm_k"],
        "A_ssm_D": _A_in["ssm_D"],
        "B_x": _B_in["x"],
        "B_w1": _B_in["w1"],
        "B_b1": _B_in["b1"],
        "B_w2": _B_in["w2"],
        "B_b2": _B_in["b2"],
    }

def reference(A_q, A_k, A_v, A_shift_k, A_ssm_k, A_ssm_D, B_x, B_w1, B_b1, B_w2, B_b2):
    def _A_ref(q, k, v, shift_k, ssm_k, ssm_D):
        B, S, D = q.shape
        ks = shift_k.shape[-1]
        k_pad = _pad(k, ((0, 0), (ks - 1, 0), (0, 0)))
        k_shift = torch.zeros_like(k)
        for t in range(ks):
            k_shift = k_shift + k_pad[:, t:t + S, :] * shift_k[:, ks - 1 - t][None, None, :]
        kv = k_shift * v
        L = 2 * S
        kv_pad = _pad(kv, ((0, 0), (0, S), (0, 0)))
        kf_pad = _pad(ssm_k, ((0, 0), (0, S)))
        kv_f = (lambda x, axes=(-2,-1): torch.fft.rfft2(x.float(), dim=axes))(kv_pad[:, None, :, :], axes=(1, 2))
        kf_f = (lambda x, axes=(-2,-1): torch.fft.rfft2(x.float(), dim=axes))(kf_pad[:, None, :], axes=(1, 2))
        kf_f = (lambda x, *d: x.permute(*d))(kf_f, 1, 2, 0)
        y_f = kv_f * kf_f[None, :, :, :]
        y = (lambda x, s, axes=(-2,-1): torch.fft.irfft2(x, s=s, dim=axes).to(torch.bfloat16))(y_f, (1, L), axes=(1, 2))[:, 0, :S, :]
        y = y + kv * ssm_D[None, None, :]
        return q * y

    def _B_ref(x, w1, b1, w2, b2):
        y = _layernorm(x, axis=-1)
        h = _gelu(torch.einsum("bsd,df->bsf", y, w1) + b1)
        return torch.einsum("bsf,fd->bsd", h, w2) + b2

    x = A_q
    xn = _layernorm(x, axis=-1)
    return x + _A_ref(xn, A_k, A_v, A_shift_k, A_ssm_k, A_ssm_D) + _B_ref(xn, B_w1, B_b1, B_w2, B_b2)
```

```python
import re

TRANS = ("v_exp_f32", "v_log_f32", "v_rcp_f32", "v_rsq_f32", "v_sqrt_f32", "v_sin_f32", "v_cos_f32",
         "v_rcp_iflag_f32")

_REG = re.compile(r"^(-|abs\()?([vsa])(\d+)\)?$")
_RNG = re.compile(r"^(-|abs\()?([vsa])\[(\d+):(\d+)\]\)?$")


def regs_of(tok):
    tok = tok.strip()
    m = _REG.match(tok)
    if m:
        return {(m.group(2), int(m.group(3)))}
    m = _RNG.match(tok)
    if m:
        return {(m.group(2), i) for i in range(int(m.group(3)), int(m.group(4)) + 1)}
    if tok in ("vcc", "vcc_lo", "vcc_hi"):
        return {("vcc", 0)}
    if tok == "m0":
        return {("m0", 0)}
    if tok in ("exec", "exec_lo", "exec_hi"):
        return {("exec", 0)}
    return set()


class Ins:
    __slots__ = ("text", "mn", "ops", "kind", "dst", "src", "label", "target", "passes", "srcc", "srcab",
                 "wide_store_data", "lds_dma", "nops", "dpp")

    def __init__(self, text):
        self.text = text
        self.label = None
        self.target = None
        self.dst = set()
        self.src = set()
        self.kind = "other"
        self.passes = 0
        self.srcc = set()
        self.srcab = set()
        self.wide_store_data = set()
        self.lds_dma = False
        self.nops = 1
        self.dpp = False
        t = text.split(";")[0].strip()
        if t.endswith(":"):
            self.label = t[:-1]
            self.kind = "label"
            self.nops = 0
            self.mn = ""
            self.ops = []
            return
        if t.startswith(".") or not t:
            self.kind = "directive"
            self.nops = 0
            self.mn = ""
            self.ops = []
            return
        parts = t.split(None, 1)
        mn = parts[0]
        self.mn = mn
        rest = parts[1] if len(parts) > 1 else ""
        ops, cur, depth = [], "", 0
        for ch in rest:
            if ch in "[(":
                depth += 1
            if ch in "])":
                depth -= 1
            if ch == "," and depth == 0:
                ops.append(cur.strip())
                cur = ""
            else:
                cur += ch
        if cur.strip():
            ops.append(cur.strip())
        mods = ""
        if ops:
            sp = ops[-1].split(None, 1)
            if len(sp) > 1:
                ops[-1] = sp[0]
                mods = sp[1]
        self.ops = ops
        R = [regs_of(o) for o in ops]
        allr = set().union(*R) if R else set()
        if mn == "s_nop":
            self.kind = "salu"
            self.nops = int(ops[0], 0) + 1
        elif mn.startswith("s_cbranch") or mn == "s_branch":
            self.kind = "branch"
            self.target = ops[0]
        elif mn.startswith("s_load") or mn.startswith("s_buffer_load") or mn in ("s_memtime", "s_memrealtime"):
            self.kind = "smem"
            self.dst = R[0]
            self.src = set().union(*R[1:]) if len(R) > 1 else set()
        elif mn.startswith("s_"):
            self.kind = "salu"
            if mn.startswith("s_cmp") or mn in ("s_waitcnt", "s_barrier", "s_endpgm", "s_sleep", "s_setprio",
                                               "s_bitcmp0_b32", "s_bitcmp1_b32"):
                self.src = allr
            else:
                self.dst = R[0] if R else set()
                self.src = set().union(*R[1:]) if len(R) > 1 else set()
                if "saveexec" in mn:
                    self.dst = self.dst | {("exec", 0)}
        elif mn.startswith("v_mfma"):
            self.kind = "mfma"
            self.dst = R[0]
            self.srcab = R[1] | R[2]
            self.srcc = R[3]
            self.src = self.srcab | self.srcc
            self.passes = 8 if "32x32x16" in mn else 4
            assert "32x32x16" in mn or "16x16x32" in mn, mn
        elif mn.startswith("v_"):
            self.kind = "valu"
            base = mn.replace("_e32", "").replace("_e64", "")
            if "_dpp" in mn or "quad_perm" in mods or "row_" in mods:
                self.dpp = True
            if base.startswith("v_permlane"):
                self.dst = R[0] | R[1]
                self.src = R[0] | R[1]
            elif base in ("v_add_co_u32", "v_sub_co_u32", "v_addc_co_u32", "v_subb_co_u32", "v_mad_u64_u32"):
                self.dst = R[0] | R[1]
                self.src = set().union(*R[2:])
            else:
                self.dst = R[0]
                self.src = set().union(*R[1:]) if len(R) > 1 else set()
                if base.startswith(("v_fmac", "v_dot2c", "v_pk_fmac", "v_writelane")):
                    self.src = self.src | R[0]
                if base.startswith("v_cmpx"):
                    raise ValueError("avoid v_cmpx")
        elif mn.startswith("buffer_") or mn.startswith("global_"):
            self.kind = "vmem"
            is_lds = (" lds" in (" " + mods)) or "_lds_" in mn
            if "store" in mn or "atomic" in mn:
                self.src = allr
                data = R[0] if mn.startswith("buffer_") else R[1]
                if mn.endswith("x4") or mn.endswith("x3"):
                    self.wide_store_data = data
            elif is_lds:
                self.lds_dma = True
                self.src = allr | {("m0", 0)}
            elif mn.startswith("buffer_inv") or mn.startswith("buffer_wbl2"):
                pass
            else:
                self.dst = R[0]
                self.src = set().union(*R[1:])
        elif mn.startswith("ds_"):
            self.kind = "ds"
            if mn.startswith("ds_write") or mn.startswith("ds_add"):
                self.src = allr
            else:
                self.dst = R[0]
                self.src = set().union(*R[1:])
        else:
            raise ValueError("unknown instruction class: " + text)

    @property
    def is_trans(self):
        return self.kind == "valu" and self.mn.replace("_e32", "").replace("_e64", "") in TRANS

    @property
    def is_dot(self):
        return self.kind == "valu" and self.mn.startswith("v_dot")


def vonly(s):
    return {r for r in s if r[0] in ("v", "a")}


def sonly(s):
    return {r for r in s if r[0] in ("s", "vcc")}


def required(p, c):
    need = 0
    if p.kind == "valu":
        pv = vonly(p.dst)
        ps = sonly(p.dst)
        if pv:
            if c.kind == "mfma" and pv & c.src:
                need = max(need, 3 if p.is_dot else 2)
            if c.kind == "valu":
                base = c.mn.replace("_e32", "").replace("_e64", "")
                if base in ("v_readfirstlane_b32", "v_readlane_b32") and pv & c.src:
                    need = max(need, 1)
                if (base.startswith("v_permlane") or c.dpp) and pv & c.src:
                    need = max(need, 2)
                if p.is_trans and not c.is_trans and pv & c.src:
                    need = max(need, 1)
                if p.is_trans and c.is_trans and pv & c.src:
                    need = max(need, 1)
            if p.is_dot and (pv & (c.src | c.dst)):
                same = c.kind == "valu" and c.mn == p.mn
                if same:
                    ab = set().union(*[regs_of(o) for o in c.ops[1:3]])
                    if pv & ab:
                        need = max(need, 3)
                else:
                    need = max(need, 3)
        if ps:
            if c.kind == "vmem" and ps & c.src:
                need = max(need, 5)
            if c.kind == "valu":
                base = c.mn.replace("_e32", "").replace("_e64", "")
                if ps & c.src:
                    need = max(need, 4 if base in ("v_readlane_b32", "v_writelane_b32") else 2)
            if c.kind in ("salu", "smem") and ps & c.src:
                need = max(need, 1)
    if p.kind == "mfma":
        big = {4: 8, 8: 12}[p.passes]
        ovl = {4: 6, 8: 10}[p.passes]
        war = {4: 3, 8: 7}[p.passes]
        if c.kind == "mfma":
            if p.dst & c.srcab:
                need = max(need, big)
            if p.dst & c.srcc and not (p.dst == c.srcc and p.passes == c.passes):
                need = max(need, ovl)
            if p.dst & c.dst and not (p.dst == c.srcc and p.dst == c.dst):
                need = max(need, ovl)
        elif c.kind in ("valu", "vmem", "ds"):
            if p.dst & (c.src | c.dst):
                need = max(need, big)
            if c.kind == "valu" and p.srcc & c.dst:
                need = max(need, war)
    if p.kind == "salu" and ("m0", 0) in p.dst and c.lds_dma:
        need = max(need, 1)
    if p.kind == "vmem" and p.wide_store_data & c.dst:
        need = max(need, 2)
    return need


MAXD = 14


class Asm:
    def __init__(self):
        self.lines = []

    def __call__(self, text):
        for ln in text.split("\n"):
            ln = ln.strip()
            if ln:
                self.lines.append(ln)

    def label(self, name):
        self.lines.append(name + ":")

    def finalize(self):
        ins = [Ins(t) for t in self.lines]
        changed = True
        rounds = 0
        while changed:
            changed = False
            rounds += 1
            assert rounds < 200
            labels = {x.label: i for i, x in enumerate(ins) if x.label}
            preds = {}
            for i, x in enumerate(ins):
                if x.kind == "branch":
                    preds.setdefault(labels[x.target], []).append(i)
            for i, c in enumerate(ins):
                if c.nops == 0 or c.mn == "s_nop":
                    continue
                worst = 0
                stack = [(i - 1, 0)]
                seen = set()
                while stack:
                    j, dist = stack.pop()
                    if j < 0 or dist >= MAXD or (j, dist) in seen:
                        continue
                    seen.add((j, dist))
                    p = ins[j]
                    if p.kind == "label":
                        for b in preds.get(j, []):
                            stack.append((b, dist))
                        q = ins[j - 1] if j > 0 else None
                        if q is not None and q.mn in ("s_branch", "s_endpgm"):
                            continue
                        stack.append((j - 1, dist))
                        continue
                    if p.nops:
                        r = required(p, c)
                        if r > dist:
                            worst = max(worst, r - dist)
                    stack.append((j - 1, dist + p.nops))
                if worst > 0:
                    ins.insert(i, Ins("s_nop %d" % (worst - 1)))
                    changed = True
                    break_idx = i
                    break
            else:
                break
        return "\n".join(("" if x.kind == "label" else "    ") + x.text for x in ins)

    def finalize_fast(self):
        ins = [Ins(t) for t in self.lines]
        for _ in range(10):
            labels = {x.label: i for i, x in enumerate(ins) if x.label}
            preds = {}
            for i, x in enumerate(ins):
                if x.kind == "branch":
                    preds.setdefault(labels[x.target], []).append(i)
            extra = {}
            for i, c in enumerate(ins):
                if c.nops == 0 or c.mn == "s_nop":
                    continue
                worst = 0
                stack = [(i - 1, 0)]
                seen = set()
                while stack:
                    j, dist = stack.pop()
                    if j < 0 or dist >= MAXD or (j, dist) in seen:
                        continue
                    seen.add((j, dist))
                    p = ins[j]
                    if p.kind == "label":
                        for b in preds.get(j, []):
                            stack.append((b, dist))
                        q = ins[j - 1] if j > 0 else None
                        if q is not None and q.mn in ("s_branch", "s_endpgm"):
                            continue
                        stack.append((j - 1, dist))
                        continue
                    if p.nops:
                        r = required(p, c)
                        if r > dist:
                            worst = max(worst, r - dist)
                    stack.append((j - 1, dist + p.nops + extra.get(j, 0)))
                if worst > 0:
                    extra[i] = worst
            if not extra:
                break
            out = []
            for i, x in enumerate(ins):
                if i in extra:
                    out.append(Ins("s_nop %d" % (extra[i] - 1)))
                out.append(x)
            ins = out
        else:
            raise RuntimeError("hazard padding did not converge")
        self.final = ins
        return "\n".join(("" if x.kind == "label" else "    ") + x.text for x in ins)


class Cnt:
    def __init__(self, a, name, maxv):
        self.a, self.name, self.maxv = a, name, maxv
        self.q = []

    def issue(self, tag, n=1):
        for _ in range(n):
            self.q.append(tag)

    def wait(self, tag):
        idx = [i for i, t in enumerate(self.q) if t == tag]
        if not idx:
            return
        n = len(self.q) - 1 - idx[-1]
        n = min(n, self.maxv)
        self.a("s_waitcnt %s(%d)" % (self.name, n))
        self.q = self.q[len(self.q) - n:] if n else []

    def wait_all(self):
        self.a("s_waitcnt %s(0)" % self.name)
        self.q = []

    def clone(self):
        c = Cnt(self.a, self.name, self.maxv)
        c.q = list(self.q)
        return c
```

```python
import sys, os, struct, math
sys.path.insert(0, os.path.dirname(os.path.abspath(__file__)))
from asmlib import Asm, Cnt

NAME = "parallel_sum__ssm_conv_h3__mixer_channel_mlp__prompt"
PROF = int(os.environ.get("PROF", "0"))

UP = 4224
WS_U = 0
WS_Z = 512 * UP
WS_H = WS_Z + (2 << 20)
WS_ST = WS_H + 32 * 56 * 4096
WS_FK = WS_ST + 16384
WS_FH = WS_FK + 2048
WS_FZ = WS_FH + 16384
WS_PROF = WS_FZ + 8192
WS_END = WS_PROF + 256 * 8 * 64

RP = 16416
LDS_H = 8 * RP
HP = 4224
LDS_U = LDS_H + 2 * HP
UBP = 5120
LDS_END = LDS_U + 4 * UBP
assert LDS_U % 512 == 0 and LDS_END <= 163840

sW, sX, sIDX, sRB, sCB, sRT, sCT, sROT = 3, 4, 5, 6, 7, 8, 9, 10
sQ, sK, sV, sSK, sSSM, sDD, sW1, sB1, sW2, sB2, sOUT, sDBG, sWS = [44 + 4 * i for i in range(13)]
sTAG = 96


def srd(b):
    return "s[%d:%d]" % (b, b + 3)


def vr(b, n):
    return "v[%d:%d]" % (b, b + n - 1)


def f32(x):
    return "0x%08x" % struct.unpack("<I", struct.pack("<f", x))[0]


a = Asm()
vm = Cnt(a, "vmcnt", 63)
lg = Cnt(a, "lgkmcnt", 15)
uid = [0]


def newlabel(p):
    uid[0] += 1
    return "L_%s_%d" % (p, uid[0])


def stamp(slot):
    if not PROF:
        return
    a("s_memrealtime s[98:99]")
    a("s_waitcnt lgkmcnt(0)")
    a("v_writelane_b32 v255, s98, %d" % slot)
    lg.q = []


def poll(vaddr, tmp):
    L, Dn = newlabel("poll"), newlabel("polld")
    a("s_mov_b32 s100, 40000")
    a.label(L)
    a("buffer_load_dwordx2 %s, v%d, %s, 0 offen sc1" % (vr(tmp, 2), vaddr, srd(sWS)))
    a("s_waitcnt vmcnt(0)")
    a("v_cmp_ne_u64 vcc, s[%d:%d], %s" % (sTAG, sTAG + 1, vr(tmp, 2)))
    a("s_cbranch_vccz %s" % Dn)
    a("s_sub_u32 s100, s100, 1")
    a("s_cbranch_scc1 %s" % Dn)
    a("s_sleep 1")
    a("s_branch %s" % L)
    a.label(Dn)
    vm.q = []


def get_tag(tmp):
    L, Dn = newlabel("tag"), newlabel("tagd")
    vm.wait("tag")
    a("s_mov_b32 s100, 40000")
    a.label(L)
    a("v_readfirstlane_b32 s%d, v%d" % (sTAG, tmp))
    a("v_readfirstlane_b32 s%d, v%d" % (sTAG + 1, tmp + 1))
    a("s_cmp_lg_u32 s%d, 0" % sTAG)
    a("s_cbranch_scc1 %s" % Dn)
    a("s_sub_u32 s100, s100, 1")
    a("s_cbranch_scc1 %s" % Dn)
    a("buffer_load_dwordx2 %s, off, %s, 0 sc1" % (vr(tmp, 2), srd(sDBG)))
    a("s_waitcnt vmcnt(0)")
    a("s_branch %s" % L)
    a.label(Dn)


def flag_store(soff_reg, tmp):
    a("v_mov_b32 v%d, s%d" % (tmp, sTAG))
    a("v_mov_b32 v%d, s%d" % (tmp + 1, sTAG + 1))
    a("s_mov_b64 exec, 1")
    a("buffer_store_dwordx2 %s, off, %s, s%d sc1" % (vr(tmp, 2), srd(sWS), soff_reg))
    a("s_mov_b64 exec, -1")
    vm.issue("flag")


a("s_cmp_ge_u32 s2, 256")
a("s_cbranch_scc1 L_end")
a("s_load_dwordx16 s[16:31], s[0:1], 0")
a("s_load_dwordx8 s[32:39], s[0:1], 64")
a("s_load_dwordx4 s[40:43], s[0:1], 96")
a("s_getpc_b64 s[12:13]")
a("v_lshlrev_b32 v2, 7, v0")
a("v_min_u32 v2, CODE_BYTES, v2")
a("global_load_dword v254, v2, s[12:13]")
vm.issue("pf")
if PROF:
    a("v_mov_b32 v255, 0")
a("v_readfirstlane_b32 s%d, v0" % sW)
a("v_and_b32 v1, 63, v0")
a("s_lshr_b32 s%d, s%d, 6" % (sW, sW))
a("s_and_b32 s%d, s2, 7" % sX)
a("s_lshr_b32 s%d, s2, 3" % sIDX)
a("s_mul_i32 s11, s%d, 37" % sIDX)
a("s_lshr_b32 s11, s11, 8")
a("s_mul_i32 s14, s11, 7")
a("s_sub_u32 s14, s%d, s14" % sIDX)
a("s_lshr_b32 s15, s%d, 1" % sX)
a("s_lshl_b32 s15, s15, 2")
a("s_add_u32 s%d, s15, s11" % sRB)
a("s_and_b32 s15, s%d, 1" % sX)
a("s_mul_i32 s15, s15, 7")
a("s_add_u32 s%d, s15, s14" % sCB)
a("s_lshl_b32 s11, s11, 2")
a("s_lshl_b32 s14, s14, 1")
a("s_add_u32 s%d, s11, s14" % sROT)
a("s_and_b32 s%d, s%d, 15" % (sROT, sROT))
a("s_lshr_b32 s11, s%d, 3" % sIDX)
a("s_lshl_b32 s%d, s%d, 2" % (sRT, sX))
a("s_add_u32 s%d, s%d, s11" % (sRT, sRT))
a("s_and_b32 s%d, s%d, 7" % (sCT, sIDX))

a("v_and_b32 v3, 15, v1")
a("v_lshrrev_b32 v4, 4, v1")
a("v_and_b32 v5, 3, v1")
a("v_bfe_u32 v6, v1, 2, 2")
a("v_lshrrev_b32 v7, 2, v1")
a("v_lshrrev_b32 v8, 5, v0")
a("v_and_b32 v11, 31, v1")
a("s_lshl_b32 s11, s%d, 16" % sIDX)
a("s_lshl_b32 s14, s%d, 7" % sX)
a("s_add_u32 s11, s11, s14")
a("v_lshlrev_b32 v9, 12, v8")
a("v_lshl_add_u32 v9, v11, 2, v9")
a("v_add_u32 v12, s11, v9")
a("v_subrev_u32 v13, 3072, v12")
a("s_lshl_b32 s14, s%d, 9" % sX)
a("v_lshlrev_b32 v10, 4, v11")
a("v_add_u32 v10, s14, v10")
a("v_lshlrev_b32 v14, 2, v8")
a("v_sub_u32 v14, 60, v14")
a("v_lshrrev_b32 v15, 3, v14")
a("v_and_b32 v16, 7, v11")
a("v_xor_b32 v15, v15, v16")
a("v_and_b32 v14, 4, v14")
a("v_lshlrev_b32 v14, 1, v14")
a("v_lshl_add_u32 v14, v15, 4, v14")
a("v_lshl_add_u32 v14, v11, 8, v14")
a("v_add_u32 v14, %d, v14" % LDS_U)
a("v_lshrrev_b32 v16, 3, v0")
a("v_and_b32 v17, 7, v1")
a("v_bfe_u32 v15, v16, 1, 3")
a("v_xor_b32 v15, v15, v17")
a("v_lshlrev_b32 v15, 4, v15")
a("v_lshl_add_u32 v15, v16, 7, v15")
a("v_add_u32 v15, %d, v15" % LDS_U)
a("s_movk_i32 s14, %d" % UP)
a("v_mul_lo_u32 v16, v16, s14")
a("v_lshl_add_u32 v16, v17, 4, v16")
a("s_mul_i32 s15, s%d, %d" % (sX, 64 * UP))
a("s_lshl_b32 s11, s%d, 7" % sIDX)
a("s_sub_u32 s15, s15, s11")
a("s_add_u32 s15, s15, %d" % (WS_U + 1984 * 2))
a("v_add_u32 v16, s15, v16")
a("v_and_b32 v18, 1, v4")
a("v_lshlrev_b32 v18, 1, v18")
a("v_xor_b32 v19, v18, v5")
a("v_lshlrev_b32 v18, 4, v19")
a("v_lshl_add_u32 v18, v7, 10, v18")
a("s_lshl_b32 s11, s%d, 17" % sRB)
a("s_lshl_b32 s14, s%d, 14" % sW)
a("s_add_u32 s11, s11, s14")
a("v_add_u32 v18, s11, v18")
a("s_mul_i32 s15, s%d, %d" % (sW, RP))
a("v_bfe_u32 v20, v1, 2, 1")
a("v_lshlrev_b32 v20, 1, v20")
a("v_xor_b32 v20, v20, v4")
a("v_lshlrev_b32 v20, 4, v20")
a("v_lshl_add_u32 v20, v3, 6, v20")
a("v_add_u32 v20, s15, v20")
a("s_and_b32 s11, s%d, 3" % sW)
a("s_lshl_b32 s11, s11, 3")
a("s_lshr_b32 s14, s%d, 2" % sW)
a("s_lshl_b32 s14, s14, 2")
a("s_add_u32 s11, s11, s14")
a("s_mul_i32 s11, s11, 3584")
a("s_lshl_b32 s14, s%d, 8" % sCB)
a("s_add_u32 s11, s11, s14")
a("v_mul_u32_u24 v21, 3584, v6")
a("v_lshl_add_u32 v21, v4, 6, v21")
a("v_lshl_add_u32 v21, v5, 4, v21")
a("v_add_u32 v21, s11, v21")
a("v_mul_u32_u24 v22, %d, v4" % RP)
a("v_lshl_add_u32 v22, v6, 6, v22")
a("v_lshl_add_u32 v22, v5, 3, v22")
a("v_add_u32 v23, %d, v22" % (4 * RP))
a("s_lshl_b32 s14, s%d, 8" % sCB)
a("v_lshlrev_b32 v24, 3, v4")
a("v_add_u32 v24, s14, v24")
a("v_lshlrev_b32 v25, 4, v1")
a("v_and_b32 v26, 1, v4")
a("v_mul_u32_u24 v26, %d, v26" % HP)
a("v_lshl_add_u32 v26, v3, 2, v26")
a("v_add_u32 v26, %d, v26" % LDS_H)
a("v_mov_b32 v27, 0")
a("ds_write_b32 v26, v27")
a("s_waitcnt lgkmcnt(0)")
stamp(0)
sizes = {sQ: 2 << 20, sK: 2 << 20, sV: 2 << 20, sSK: 4096, sSSM: 2 << 20, sDD: 1024, sW1: 512 * 3584, sB1: 3584,
         sW2: 1792 * 1024, sB2: 1024, sOUT: 2 << 20, sDBG: 256, sWS: WS_END}
ptr = {sQ: 16, sK: 18, sV: 20, sSK: 22, sSSM: 24, sDD: 26, sW1: 30, sB1: 32, sW2: 34, sB2: 36, sOUT: 38, sDBG: 40,
       sWS: 42}


def mksrd(b):
    a("s_mov_b64 s[%d:%d], s[%d:%d]" % (b, b + 1, ptr[b], ptr[b] + 1))
    a("s_mov_b32 s%d, %d" % (b + 2, sizes[b]))
    a("s_mov_b32 s%d, 0x20000" % (b + 3))


for b in (sK, sV, sSK):
    mksrd(b)
for j in range(3):
    a("buffer_load_dword v%d, v13, %s, 0 offen offset:%d" % (32 + j, srd(sK), 1024 * j))
for j in range(4):
    a("buffer_load_dword v%d, v12, %s, 0 offen offset:%d" % (35 + j, srd(sK), 1024 * j))
for j in range(4):
    a("buffer_load_dword v%d, v12, %s, 0 offen offset:%d" % (39 + j, srd(sV), 1024 * j))
a("buffer_load_dwordx4 v[44:47], v10, %s, 0 offen" % srd(sSK))
vm.issue("prep", 12)
for b in (sQ, sDBG, sWS, sSSM, sW1, sB1, sDD, sW2, sB2, sOUT):
    mksrd(b)
a("s_or_b32 s11, s2, s%d" % sW)
a("s_cmp_lg_u32 s11, 0")
a("s_cbranch_scc1 L_notag")
a("s_memrealtime s[98:99]")
a("s_waitcnt lgkmcnt(0)")
a("s_or_b32 s98, s98, 1")
a("v_mov_b32 v28, s98")
a("v_mov_b32 v29, s99")
a("s_mov_b64 exec, 1")
a("buffer_store_dwordx2 v[28:29], off, %s, 0 sc1" % srd(sDBG))
a("s_mov_b64 exec, -1")
a.label("L_notag")
a("s_cmp_ge_u32 s%d, 28" % sIDX)
a("s_cbranch_scc1 L_nox")
for i in range(16):
    a("s_add_u32 s11, s%d, %d" % (sROT, i))
    a("s_and_b32 s11, s11, 15")
    a("s_lshl_b32 s11, s11, 6")
    a("s_add_u32 m0, s15, %d" % (i * 1024))
    a("buffer_load_dwordx4 v18, %s, s11 offen lds" % srd(sQ))
    vm.issue("x%d" % (i // 4))
for t in range(8):
    a("buffer_load_dwordx2 %s, v24, %s, 0 offen offset:%d" % (vr(192 + 2 * t, 2), srd(sB1), 32 * t))
    vm.issue("b1")
def h_dma():
    a("s_lshl_b32 s11, s%d, 6" % sX)
    a("s_lshl_b32 s14, s%d, 1" % sIDX)
    a("s_add_u32 s11, s11, s14")
    a("s_lshl_b32 s11, s11, 12")
    a("s_lshl_b32 s14, s%d, 10" % sW)
    a("s_add_u32 s11, s11, s14")
    a("s_lshr_b32 s16, s%d, 2" % sW)
    a("s_mul_i32 s16, s16, %d" % (HP - 4096))
    a("s_add_u32 s16, s16, s14")
    a("s_add_u32 m0, s16, %d" % (LDS_H + 64))
    a("buffer_load_dwordx4 v25, %s, s11 offen lds" % srd(sSSM))
h_dma()
vm.issue("hdma")
vm.wait("prep")
a("s_branch L_prep")
a.label("L_nox")
h_dma()
a("s_waitcnt vmcnt(1)")
a.label("L_prep")
stamp(1)
a("s_mov_b32 s16, 0x05040100")
a("s_mov_b32 s17, 0x07060302")
a("s_mov_b32 s18, 0xffff0000")
for e in range(2):
    sel = "s%d" % (16 + e)
    for m in range(6):
        a("v_perm_b32 v%d, v%d, v%d, %s" % (48 + m, 32 + m, 33 + m, sel))
    for j in range(4):
        a("v_dot2_f32_bf16 v%d, v%d, v%d, 0" % (54 + j, 50 + j, 44 + 2 * e))
    for j in range(4):
        a("v_dot2_f32_bf16 v%d, v%d, v%d, v%d" % (54 + j, 48 + j, 45 + 2 * e, 54 + j))
    for j in range(4):
        if e == 0:
            a("v_lshlrev_b32 v%d, 16, v%d" % (58 + j, 39 + j))
        else:
            a("v_and_b32 v%d, s18, v%d" % (58 + j, 39 + j))
    for j in range(4):
        a("v_mul_f32 v%d, v%d, v%d" % (54 + j, 54 + j, 58 + j))
    a("v_cvt_pk_bf16_f32 v%d, v57, v56" % (28 + 2 * e))
    a("v_cvt_pk_bf16_f32 v%d, v55, v54" % (29 + 2 * e))
    a("ds_write_b64 v14, %s offset:%d" % (vr(28 + 2 * e, 2), 128 * e))
a("s_waitcnt lgkmcnt(0)")
a("s_barrier")
a("ds_read_b128 v[28:31], v15")
a("s_waitcnt lgkmcnt(0)")
a("buffer_store_dwordx4 v[28:31], v16, %s, 0 offen sc1" % srd(sWS))
vm.issue("kvt")
a("buffer_load_dwordx2 v[62:63], off, %s, 0 sc1" % srd(sDBG))
vm.issue("tag")
stamp(2)
a("s_lshl_b32 s19, s%d, 8" % sX)
a("s_lshl_b32 s11, s%d, 3" % sIDX)
a("s_add_u32 s19, s19, s11")
a("s_add_u32 s19, s19, %d" % WS_FK)
a("s_cmp_lt_u32 s%d, 28" % sIDX)
a("s_cbranch_scc1 L_gemm1")
sv = vm.clone()
get_tag(62)
a("s_waitcnt vmcnt(0)")
a("s_barrier")
a("s_cmp_lg_u32 s%d, 0" % sW)
a("s_cbranch_scc1 L_split")
flag_store(19, 28)
a("s_branch L_split")
vm.q = sv.q

a.label("L_gemm1")
X, ACC1, WF = 64, 128, 160
S1, S2 = 32, 36
for j in range(8):
    a("v_mov_b32 v%d, 0" % (32 + j))
a("s_mov_b32 s20, 0x3f803f80")
for q in range(4):
    vm.wait("x%d" % q)
    for i in range(4 * q, 4 * q + 4):
        a("ds_read_b128 %s, v20 offset:%d" % (vr(X + 4 * i, 4), 1024 * i))
    a("s_waitcnt lgkmcnt(0)")
    for i in range(4 * q, 4 * q + 4):
        a("s_add_u32 s11, s%d, %d" % (sROT, i))
        a("s_and_b32 s11, s11, 15")
        a("s_mul_i32 s11, s11, %d" % (32 * 3584))
        a("s_add_u32 m0, s15, %d" % (i * 1024))
        a("buffer_load_dwordx4 v21, %s, s11 offen lds" % srd(sW1))
        vm.issue("w%d" % (i // 2))
    for r in range(16 * q, 16 * q + 16):
        a("v_dot2c_f32_bf16 v%d, s20, v%d" % (S1 + (r & 3), X + r))
        a("v_dot2c_f32_bf16 v%d, v%d, v%d" % (S2 + (r & 3), X + r, X + r))
stamp(3)
a("v_add_f32 v32, v32, v33")
a("v_add_f32 v34, v34, v35")
a("v_add_f32 v36, v36, v37")
a("v_add_f32 v38, v38, v39")
a("v_add_f32 v32, v32, v34")
a("v_add_f32 v36, v36, v38")
for op in ("v_permlane32_swap_b32", "v_permlane16_swap_b32"):
    a("v_mov_b32 v33, v32")
    a("v_mov_b32 v37, v36")
    a("%s v32, v33" % op)
    a("%s v36, v37" % op)
    a("v_add_f32 v32, v32, v33")
    a("v_add_f32 v36, v36, v37")
a("v_mul_f32 v40, %s, v32" % f32(1.0 / 512))
a("v_mul_f32 v36, %s, v36" % f32(1.0 / 512))
a("v_fma_f32 v36, -v40, v40, v36")
a("v_max_f32 v36, 0, v36")
a("v_add_f32 v33, %s, v36" % f32(1e-5))
a("v_rsq_f32 v41, v33")
a("v_mul_f32 v36, v36, v41")
a("v_mul_f32 v36, v36, v41")
a("v_add_f32 v36, %s, v36" % f32(1e-5))
a("v_rsq_f32 v36, v36")
a("v_mul_f32 v42, v41, v36")
a("v_mul_f32 v44, v40, v42")
a("v_sub_f32 v44, 0, v44")
vm.wait("b1")
for t in range(8):
    for hh in range(2):
        a("v_lshlrev_b32 v%d, 16, v%d" % (ACC1 + 4 * t + 2 * hh, 192 + 2 * t + hh))
        a("v_and_b32 v%d, s18, v%d" % (ACC1 + 4 * t + 2 * hh + 1, 192 + 2 * t + hh))
get_tag(62)


def norm_ops(i):
    ops = []
    for d in range(4):
        r = X + 4 * i + d
        t = 46 + 2 * (d & 1)
        ops.append("v_lshlrev_b32 v%d, 16, v%d" % (t, r))
        ops.append("v_and_b32 v%d, s18, v%d" % (t + 1, r))
        ops.append("v_pk_fma_f32 %s, %s, v[42:43], v[44:45] op_sel_hi:[1,0,0]" % (vr(t, 2), vr(t, 2)))
        ops.append("v_cvt_pk_bf16_f32 v%d, v%d, v%d" % (r, t, t + 1))
    return ops


for i in range(17):
    if i < 16 and i % 2 == 0:
        vm.wait("w%d" % (i // 2))
        a("s_barrier")
        if i == 0:
            a("s_cmp_lg_u32 s%d, 0" % sW)
            a("s_cbranch_scc1 L_nofk")
            flag_store(19, 28)
            vm.q.pop()
            a.label("L_nofk")
            stamp(4)
    nops = norm_ops(i) if i < 16 else []
    for t in range(8):
        if i > 0:
            lg.wait("r%d_%d" % (i - 1, t))
            a("v_mfma_f32_16x16x32_bf16 %s, %s, %s, %s" % (vr(ACC1 + 4 * t, 4), vr(WF + 4 * t, 4),
                                                          vr(X + 4 * (i - 1), 4), vr(ACC1 + 4 * t, 4)))
        if i < 16:
            off = i * 1024 + (t >> 1) * 256 + (t & 1) * 32
            a("ds_read_b64_tr_b16 %s, v22 offset:%d" % (vr(WF + 4 * t, 2), off))
            a("ds_read_b64_tr_b16 %s, v23 offset:%d" % (vr(WF + 4 * t + 2, 2), off))
            lg.issue("r%d_%d" % (i, t), 2)
            a(nops[2 * t])
            a(nops[2 * t + 1])
a("s_barrier")
stamp(5)
a("s_cmp_lg_u32 s%d, 0" % sCB)
a("s_cbranch_scc1 L_nost")
a("s_lshl_b32 s11, s%d, 10" % sRB)
a("s_lshl_b32 s14, s%d, 7" % sW)
a("s_add_u32 s11, s11, s14")
a("s_add_u32 s11, s11, %d" % WS_ST)
a("v_lshlrev_b32 v28, 3, v1")
a("s_mov_b64 exec, 0xffff")
a("buffer_store_dwordx2 v[40:41], v28, %s, s11 offen sc1" % srd(sWS))
a("s_mov_b64 exec, -1")
a.label("L_nost")
c1 = -2.0 * math.sqrt(2.0 / math.pi) * math.log2(math.e)
c2 = c1 * 0.044715
a("v_mov_b32 v46, %s" % f32(c1))
a("v_mov_b32 v48, %s" % f32(c2))
a("s_lshl_b32 s21, s%d, 1" % sRB)
a("s_lshr_b32 s11, s%d, 2" % sW)
a("s_add_u32 s22, s21, s11")
a("s_mul_i32 s21, s22, 56")
a("s_lshl_b32 s11, s%d, 2" % sCB)
a("s_add_u32 s21, s21, s11")
a("s_lshl_b32 s21, s21, 2")
a("s_and_b32 s11, s%d, 3" % sW)
a("s_add_u32 s21, s21, s11")
a("s_lshl_b32 s21, s21, 10")
a("s_add_u32 s21, s21, %d" % WS_H)
a("s_lshl_b32 s22, s22, 4")
a("s_add_u32 s22, s22, s%d" % sCB)
a("s_lshl_b32 s22, s22, 2")
a("s_add_u32 s22, s22, s11")
a("s_lshl_b32 s22, s22, 3")
a("s_add_u32 s22, s22, %d" % WS_FH)
for j in range(4):
    T = 160 + 8 * (j & 1) * 2
    xs = ACC1 + 8 * j
    for p in range(4):
        a("v_pk_mul_f32 %s, %s, %s" % (vr(T + 2 * p, 2), vr(xs + 2 * p, 2), vr(xs + 2 * p, 2)))
    for p in range(4):
        a("v_pk_fma_f32 %s, %s, v[48:49], v[46:47] op_sel_hi:[1,0,0]" % (vr(T + 2 * p, 2), vr(T + 2 * p, 2)))
    for p in range(4):
        a("v_pk_mul_f32 %s, %s, %s" % (vr(T + 2 * p, 2), vr(T + 2 * p, 2), vr(xs + 2 * p, 2)))
    for p in range(8):
        a("v_exp_f32 v%d, v%d" % (T + p, T + p))
    for p in range(4):
        a("v_pk_add_f32 %s, %s, 1.0 op_sel_hi:[1,0]" % (vr(T + 2 * p, 2), vr(T + 2 * p, 2)))
    for p in range(8):
        a("v_rcp_f32 v%d, v%d" % (T + p, T + p))
    for p in range(4):
        a("v_pk_mul_f32 %s, %s, %s" % (vr(T + 2 * p, 2), vr(T + 2 * p, 2), vr(xs + 2 * p, 2)))
    for p in range(4):
        a("v_cvt_pk_bf16_f32 v%d, v%d, v%d" % (T + 8 + p, T + 2 * p, T + 2 * p + 1))
    a("buffer_store_dwordx4 %s, v25, %s, s21 offen sc1" % (vr(T + 8, 4), srd(sWS)))
    if j < 3:
        a("s_add_u32 s21, s21, 4096")
stamp(6)
a("s_waitcnt vmcnt(0)")
flag_store(22, 28)
stamp(7)

a.label("L_split")
vm.q = []
lg.q = []
a("s_cmp_ge_u32 s%d, 4" % sW)
a("s_cbranch_scc1 L_conv")

ACC2, HB, W2F = 64, 128, 192
a("s_mul_i32 s15, s%d, %d" % (sW, 2 * RP))
a("s_mul_i32 s16, s%d, %d" % (sW, 14 * 32768))
a("v_lshrrev_b32 v30, 5, v1")
a("v_lshl_add_u32 v30, v30, 3, v6")
a("v_lshlrev_b32 v30, 10, v30")
a("v_and_b32 v31, 1, v4")
a("v_lshl_add_u32 v30, v31, 6, v30")
a("v_lshl_add_u32 v30, v5, 4, v30")
a("s_lshl_b32 s11, s%d, 7" % sCT)
a("v_add_u32 v30, s11, v30")


def w2_dma(st):
    slot = st & 7
    for gp in range(2):
        for h in range(2):
            a("s_add_u32 s11, s16, %d" % ((32 * st + 16 * h + 4 * gp) * 1024))
            a("s_add_u32 m0, s15, %d" % (gp * RP + slot * 2048 + h * 1024))
            a("buffer_load_dwordx4 v30, %s, s11 offen lds" % srd(sW2))
            vm.issue("d%d" % st)


for st in range(8):
    w2_dma(st)
a("v_mul_u32_u24 v32, %d, v31" % RP)
a("v_lshrrev_b32 v33, 5, v1")
a("v_lshl_add_u32 v32, v33, 9, v32")
a("v_lshl_add_u32 v32, v6, 6, v32")
a("v_lshl_add_u32 v32, v5, 3, v32")
a("v_add_u32 v32, s15, v32")
a("s_mul_i32 s11, s%d, 7" % sW)
a("s_lshr_b32 s11, s11, 1")
a("s_lshl_b32 s14, s%d, 4" % sRT)
a("s_add_u32 s11, s11, s14")
a("s_lshl_b32 s11, s11, 5")
a("s_add_u32 s11, s11, %d" % WS_FH)
a("v_lshlrev_b32 v33, 3, v3")
a("v_add_u32 v33, s11, v33")
a("s_mul_i32 s17, s%d, 56" % sRT)
a("s_mul_i32 s11, s%d, 14" % sW)
a("s_add_u32 s17, s17, s11")
a("s_lshl_b32 s17, s17, 12")
a("s_add_u32 s17, s17, %d" % WS_H)
a("v_and_b32 v34, 7, v3")
a("v_xor_b32 v34, v34, v4")
a("v_lshlrev_b32 v34, 4, v34")
a("v_lshl_add_u32 v34, v3, 8, v34")
a("v_add_u32 v34, s15, v34")
a("v_and_b32 v35, 7, v3")
a("v_xor_b32 v35, v35, v4")
a("v_xor_b32 v35, 4, v35")
a("v_lshlrev_b32 v35, 4, v35")
a("v_lshl_add_u32 v35, v3, 8, v35")
a("v_add_u32 v35, s15, v35")
stamp(8)
poll(33, 28)
stamp(9)


def h_load(st):
    a("s_add_u32 s11, s17, %d" % (st * 4096))
    for j in range(4):
        a("buffer_load_dwordx4 %s, v25, %s, s11 offen offset:%d sc1" % (vr(HB + 16 * (st & 3) + 4 * j, 4), srd(sWS),
                                                                       1024 * j))
        vm.issue("h%d" % st)


def w2_read(st):
    slot = st & 7
    for t in range(4):
        for h in range(2):
            a("ds_read_b64_tr_b16 %s, v32 offset:%d" % (vr(W2F + 16 * (st & 1) + 4 * t + 2 * h, 2),
                                                       slot * 2048 + h * 1024 + (t >> 1) * 256 + (t & 1) * 32))
            lg.issue("r%d" % st)


for st in range(3):
    h_load(st)
w2_read(0)
for st in range(14):
    if st + 3 < 14:
        h_load(st + 3)
    if st + 1 < 14:
        vm.wait("d%d" % (st + 1))
        w2_read(st + 1)
    lg.wait("r%d" % st)
    if st + 8 < 14:
        w2_dma(st + 8)
    vm.wait("h%d" % st)
    for t in range(4):
        for j in range(4):
            acc = vr(ACC2 + (t * 4 + j) * 4, 4)
            a("v_mfma_f32_16x16x32_bf16 %s, %s, %s, %s" % (acc, vr(W2F + 16 * (st & 1) + 4 * t, 4),
                                                          vr(HB + 16 * (st & 3) + 4 * j, 4), acc if st else "0"))
stamp(10)
for t in range(4):
    for j in range(4):
        a("ds_write_b128 v%d, %s offset:%d" % (34 + (t & 1), vr(ACC2 + (t * 4 + j) * 4, 4), j * 4096 + (t >> 1) * 128))
a("s_branch L_final")

a.label("L_conv")
vm.q = []
lg.q = []
CA, AF, BF, DG = 64, 80, 112, 144
a("s_sub_u32 s16, s%d, 4" % sW)
a("s_and_b32 s17, s16, 1")
a("s_lshr_b32 s20, s16, 1")
a("s_mul_i32 s15, s16, %d" % UBP)
a("s_add_u32 s15, s15, %d" % LDS_U)
a("s_lshl_b32 s21, s%d, 6" % sX)
a("s_lshl_b32 s11, s%d, 1" % sIDX)
a("s_add_u32 s21, s21, s11")
a("s_add_u32 s21, s21, s20")
a("s_lshl_b32 s11, s21, 1")
a("buffer_load_ushort v40, off, %s, s11" % srd(sDD))
a("v_mov_b32 v44, 0")
a("v_mov_b32 v45, 0")
a("v_mov_b32 v46, 0")
a("v_mov_b32 v47, 0")
a("v_add_u32 v30, s15, v25")
a("ds_write_b128 v30, v[44:47] offset:4096")
a("s_lshl_b32 s11, s%d, 8" % sX)
a("s_add_u32 s11, s11, %d" % WS_FK)
a("v_and_b32 v31, 31, v1")
a("v_lshlrev_b32 v31, 3, v31")
a("v_add_u32 v31, s11, v31")
a("s_mul_i32 s11, s21, %d" % UP)
a("s_lshl_b32 s14, s17, 1")
a("s_sub_u32 s11, s11, s14")
a("s_add_u32 s11, s11, %d" % (WS_U + 2))
a("v_lshlrev_b32 v32, 4, v19")
a("v_lshl_add_u32 v32, v7, 6, v32")
a("v_add_u32 v32, s11, v32")
stamp(8)
poll(31, 28)
a("s_mov_b32 m0, s15")
for j in range(4):
    a("buffer_load_dwordx4 v32, %s, 0 offen offset:%d sc1 lds" % (srd(sWS), 1024 * j))
a("s_mul_i32 s11, s20, %d" % HP)
a("s_add_u32 s11, s11, %d" % (LDS_H + 4))
a("v_lshlrev_b32 v33, 2, v3")
a("v_lshl_add_u32 v33, v4, 4, v33")
a("v_add_u32 v33, s11, v33")
for pp in range(1, 4):
    a("v_add_u32 v%d, %d, v33" % (33 + pp, 1024 * pp))
a("v_sub_u32 v37, 15, v3")
a("v_lshlrev_b32 v37, 6, v37")
a("v_lshl_add_u32 v37, v4, 4, v37")
a("v_add_u32 v37, s15, v37")
a("v_lshlrev_b32 v41, 2, v4")
a("v_add_u32 v41, v41, v3")
a("v_sub_u32 v41, 15, v41")
for d in range(4):
    a("v_cmp_eq_u32 vcc, %d, v41" % d)
    a("v_cndmask_b32 v%d, 0, v40, vcc" % (DG + d))
a("s_mul_i32 s11, s17, 34")
a("s_add_u32 s11, s11, %d" % (63 * 64 + 30))
a("s_add_u32 s11, s11, s15")
a("v_mov_b32 v42, s11")
a("s_waitcnt vmcnt(0)")
a("ds_write_b16 v42, v44")
stamp(9)


def conv_reads(st, qoff):
    a("v_lshrrev_b32 v38, 3, v37")
    a("v_and_b32 v38, 32, v38")
    a("v_xor_b32 v38, v38, v37")
    a("v_add_u32 v37, 64, v37")
    for dd in range(4):
        a("ds_read_b128 %s, v38 offset:%d" % (vr(BF + 16 * st + 4 * dd, 4), (3 - dd) * 1024))
    for pp in range(4):
        for hh in range(2):
            o = 16 * qoff + 2 * hh
            a("ds_read2_b32 %s, v%d offset0:%d offset1:%d" % (vr(AF + 16 * st + 4 * pp + 2 * hh, 2), 33 + pp, o, o + 1))


def conv_mfma(st):
    for pp in range(4):
        for dd in range(4 - pp):
            acc = vr(CA + 4 * (pp + dd), 4)
            a("v_mfma_f32_16x16x32_bf16 %s, %s, %s, %s" % (acc, vr(AF + 16 * st + 4 * pp, 4),
                                                          vr(BF + 16 * st + 4 * dd, 4), acc))


conv_reads(0, 0)
a("s_waitcnt lgkmcnt(0)")
for i in range(4):
    a("v_mfma_f32_16x16x32_bf16 %s, %s, %s, 0" % (vr(CA + 4 * i, 4), vr(DG, 4), vr(BF + 4 * i, 4)))
a("s_mov_b32 s14, 8")
a.label("L_convloop")
conv_reads(1, 1)
a("s_waitcnt lgkmcnt(12)")
conv_mfma(0)
for pp in range(4):
    a("v_add_u32 v%d, 128, v%d" % (33 + pp, 33 + pp))
conv_reads(0, 0)
a("s_waitcnt lgkmcnt(12)")
conv_mfma(1)
a("s_sub_u32 s14, s14, 1")
a("s_cmp_lg_u32 s14, 0")
a("s_cbranch_scc1 L_convloop")
stamp(10)
a("v_lshlrev_b32 v38, 5, v3")
a("v_lshl_add_u32 v38, v4, 3, v38")
a("v_add_u32 v38, s15, v38")
for i in range(4):
    a("v_cvt_pk_bf16_f32 v%d, v%d, v%d" % (48 + 2 * i, CA + 4 * i, CA + 4 * i + 1))
    a("v_cvt_pk_bf16_f32 v%d, v%d, v%d" % (49 + 2 * i, CA + 4 * i + 2, CA + 4 * i + 3))
    a("ds_write_b64 v38, %s offset:%d" % (vr(48 + 2 * i, 2), 512 * i))
a("ds_read_b128 v[56:59], v30")
a("ds_read_b128 v[60:63], v30 offset:1024")
a("s_lshl_b32 s11, s21, 1")
a("s_add_u32 s11, s11, s17")
a("s_lshl_b32 s11, s11, 11")
a("s_add_u32 s11, s11, %d" % WS_Z)
a("s_waitcnt lgkmcnt(0)")
a("buffer_store_dwordx4 v[56:59], v25, %s, s11 offen sc1" % srd(sWS))
a("buffer_store_dwordx4 v[60:63], v25, %s, s11 offen offset:1024 sc1" % srd(sWS))
a("v_lshrrev_b32 v33, 1, v1")
a("v_lshlrev_b32 v33, 10, v33")
a("v_and_b32 v34, 1, v1")
a("v_lshl_add_u32 v33, v34, 4, v33")
a("s_lshl_b32 s11, s%d, 16" % sRT)
a("s_lshl_b32 s14, s%d, 7" % sCT)
a("s_lshl_b32 s22, s16, 5")
a("s_add_u32 s14, s14, s22")
a("s_add_u32 s11, s11, s14")
a("s_add_u32 m0, s15, 2048")
a("s_add_u32 s22, s11, 32768")
a("buffer_load_dwordx4 v33, %s, s11 offen lds" % srd(sQ))
a("s_add_u32 m0, s15, 3072")
a("v_lshlrev_b32 v34, 3, v4")
a("buffer_load_dwordx4 v33, %s, s22 offen lds" % srd(sQ))
a("buffer_load_dwordx2 v[40:41], v34, %s, s14 offen" % srd(sB2))
a("s_lshl_b32 s22, s%d, 5" % sX)
a("s_add_u32 s22, s22, s%d" % sIDX)
a("s_lshl_b32 s22, s22, 2")
a("s_add_u32 s22, s22, s16")
a("s_lshl_b32 s22, s22, 3")
a("s_add_u32 s22, s22, %d" % WS_FZ)
a("s_waitcnt vmcnt(3)")
flag_store(22, 28)
stamp(11)
a("s_lshl_b32 s11, s%d, 10" % sCT)
a("s_lshl_b32 s14, s16, 8")
a("s_add_u32 s11, s11, s14")
a("s_add_u32 s11, s11, %d" % WS_FZ)
a("v_lshlrev_b32 v31, 3, v1")
a("v_add_u32 v31, s11, v31")
a("s_lshl_b32 s14, s%d, 9" % sRT)
a("s_add_u32 s14, s14, %d" % WS_FH)
a("v_lshlrev_b32 v35, 3, v5")
a("v_add_u32 v35, s14, v35")
a("v_cmp_gt_u32 vcc, 32, v1")
a("v_cndmask_b32 v31, v35, v31, vcc")
a("v_lshlrev_b32 v35, 11, v7")
a("v_lshl_add_u32 v35, v5, 4, v35")
a("s_lshl_b32 s11, s%d, 18" % sCT)
a("s_lshl_b32 s14, s16, 16")
a("s_add_u32 s11, s11, s14")
a("s_lshl_b32 s14, s%d, 6" % sRT)
a("s_add_u32 s11, s11, s14")
a("s_add_u32 s11, s11, %d" % WS_Z)
a("s_add_u32 s22, s11, 32768")
a("v_lshlrev_b32 v36, 4, v3")
a("s_lshl_b32 s23, s%d, 9" % sRT)
a("s_add_u32 s23, s23, %d" % WS_ST)
poll(31, 28)
stamp(12)
a("s_mov_b32 m0, s15")
a("buffer_load_dwordx4 v[44:47], v36, %s, s23 offen sc1" % srd(sWS))
a("buffer_load_dwordx4 v35, %s, s11 offen sc1 lds" % srd(sWS))
a("s_add_u32 m0, s15, 1024")
a("buffer_load_dwordx4 v[48:51], v36, %s, s23 offen offset:256 sc1" % srd(sWS))
a("buffer_load_dwordx4 v35, %s, s22 offen sc1 lds" % srd(sWS))
a("v_lshlrev_b32 v37, 7, v7")
a("v_lshl_add_u32 v37, v5, 3, v37")
a("v_add_u32 v37, s15, v37")
a("v_lshlrev_b32 v38, 6, v3")
a("v_lshl_add_u32 v38, v4, 3, v38")
a("v_add_u32 v38, s15, v38")
a("v_lshlrev_b32 v39, 7, v3")
a("v_lshl_add_u32 v39, v4, 4, v39")
a("v_add_u32 v39, s15, v39")
a("v_lshlrev_b32 v52, 16, v40")
a("v_and_b32 v53, s18, v40")
a("v_lshlrev_b32 v54, 16, v41")
a("v_and_b32 v55, s18, v41")
for half in range(2):
    for p in range(2):
        b = half * 2 + p
        a("ds_read_b64 %s, v38 offset:%d" % (vr(64 + 2 * b, 2), 2048 + (32 * half + p) * 32))
a("s_waitcnt vmcnt(0)")
for half in range(2):
    for p in range(2):
        b = half * 2 + p
        a("ds_read_b64_tr_b16 %s, v37 offset:%d" % (vr(72 + 2 * b, 2), p * 64 + half * 32))
a("s_waitcnt lgkmcnt(0)")
for half in range(2):
    for p in range(2):
        b = half * 2 + p
        mean, r1 = 44 + 4 * half + 2 * p, 45 + 4 * half + 2 * p
        E = 80 + 4 * b
        a("v_mul_f32 v56, v%d, v%d" % (mean, r1))
        a("v_lshlrev_b32 v96, 16, v%d" % (64 + 2 * b))
        a("v_and_b32 v97, s18, v%d" % (64 + 2 * b))
        a("v_lshlrev_b32 v98, 16, v%d" % (65 + 2 * b))
        a("v_and_b32 v99, s18, v%d" % (65 + 2 * b))
        a("v_lshlrev_b32 v100, 16, v%d" % (72 + 2 * b))
        a("v_and_b32 v101, s18, v%d" % (72 + 2 * b))
        a("v_lshlrev_b32 v102, 16, v%d" % (73 + 2 * b))
        a("v_and_b32 v103, s18, v%d" % (73 + 2 * b))
        for j in range(4):
            a("v_fma_f32 v57, v%d, v%d, -v56" % (96 + j, r1))
            a("v_add_f32 v%d, v%d, v%d" % (E + j, 96 + j, 52 + j))
            a("v_fmac_f32 v%d, v57, v%d" % (E + j, 100 + j))
        a("ds_write_b128 v39, %s offset:%d" % (vr(E, 4), half * 2048 + p * 64))
stamp(13)

a.label("L_final")
a("v_lshrrev_b32 v2, 3, v0")
a("v_and_b32 v8, 7, v1")
a("v_and_b32 v9, 7, v2")
a("v_lshlrev_b32 v10, 1, v8")
a("v_xor_b32 v10, v10, v9")
a("v_lshlrev_b32 v10, 4, v10")
a("v_lshl_add_u32 v10, v2, 8, v10")
a("v_xor_b32 v11, 16, v10")
a("v_add_u32 v12, %d, v10" % (4 * RP))
a("v_add_u32 v13, %d, v11" % (4 * RP))
a("v_lshrrev_b32 v14, 1, v8")
a("v_mul_u32_u24 v14, %d, v14" % UBP)
a("v_lshl_add_u32 v14, v2, 6, v14")
a("v_and_b32 v15, 1, v8")
a("v_lshl_add_u32 v14, v15, 5, v14")
a("v_add_u32 v14, %d, v14" % LDS_U)
a("v_lshlrev_b32 v15, 10, v2")
a("v_lshl_add_u32 v15, v8, 4, v15")
a("s_lshl_b32 s11, s%d, 16" % sRT)
a("s_lshl_b32 s14, s%d, 7" % sCT)
a("s_add_u32 s11, s11, s14")
a("s_waitcnt lgkmcnt(0)")
a("s_barrier")
stamp(14)
a("ds_read_b128 v[16:19], v14")
a("ds_read_b128 v[20:23], v14 offset:16")
a("ds_read_b128 v[24:27], v10")
a("ds_read_b128 v[28:31], v11")
a("ds_read_b128 v[32:35], v10 offset:%d" % (2 * RP))
a("ds_read_b128 v[36:39], v11 offset:%d" % (2 * RP))
a("ds_read_b128 v[40:43], v12")
a("ds_read_b128 v[44:47], v13")
a("ds_read_b128 v[48:51], v12 offset:%d" % (2 * RP))
a("ds_read_b128 v[52:55], v13 offset:%d" % (2 * RP))
for g in range(4):
    a("s_waitcnt lgkmcnt(%d)" % (6 - 2 * g))
    for p in range(4):
        a("v_pk_add_f32 %s, %s, %s" % (vr(16 + 2 * p, 2), vr(16 + 2 * p, 2), vr(24 + 8 * g + 2 * p, 2)))
for p in range(4):
    a("v_cvt_pk_bf16_f32 v%d, v%d, v%d" % (56 + p, 16 + 2 * p, 17 + 2 * p))
a("buffer_store_dwordx4 v[56:59], v15, %s, s11 offen" % srd(sOUT))
if PROF:
    a("s_waitcnt vmcnt(0)")
    stamp(15)
    a("s_lshl_b32 s11, s2, 3")
    a("s_add_u32 s11, s11, s%d" % sW)
    a("s_lshl_b32 s11, s11, 6")
    a("s_add_u32 s11, s11, %d" % WS_PROF)
    a("v_lshlrev_b32 v2, 2, v1")
    a("s_mov_b64 exec, 0xffff")
    a("buffer_store_dword v255, v2, %s, s11 offen" % srd(sWS))
a.label("L_end")
a("s_endpgm")
a.label("L_codeend")

body = a.finalize_fast()
hdr = open(os.path.join(os.path.dirname(os.path.abspath(__file__)), "..", "cdna_kernels", NAME + ".s.ref")).read()
head = hdr.split("; Override launch geometry")[0]
out = head
out += "; @launch grid=(256,1,1) block=(512,1,1) lds=%d\n" % LDS_END
out += '.amdgcn_target "amdgcn-amd-amdhsa--gfx950"\n.text\n'
out += ".globl %s_kernel\n.p2align 8\n.type %s_kernel,@function\n" % (NAME, NAME)
out += "%s_kernel:\n" % NAME
out += body + "\n"
out += """.section .rodata,"a"
.p2align 6
.amdhsa_kernel %s_kernel
  .amdhsa_next_free_vgpr 256
  .amdhsa_next_free_sgpr 102
  .amdhsa_accum_offset 256
  .amdhsa_group_segment_fixed_size 0
  .amdhsa_kernarg_size 112
  .amdhsa_user_sgpr_count 2
  .amdhsa_user_sgpr_kernarg_segment_ptr 1
  .amdhsa_system_sgpr_workgroup_id_x 1
  .amdhsa_float_denorm_mode_32 3
  .amdhsa_float_denorm_mode_16_64 3
.end_amdhsa_kernel
""" % NAME
dst = sys.argv[1] if len(sys.argv) > 1 else os.path.join(os.path.dirname(os.path.abspath(__file__)), "..",
                                                         "cdna_kernels", NAME + ".s")
import subprocess, tempfile
def code_size(txt):
    with tempfile.TemporaryDirectory() as td:
        open(td + "/t.s", "w").write(txt)
        subprocess.run(["clang", "-x", "assembler", "-target", "amdgcn-amd-amdhsa", "-mcpu=gfx950",
                        "-c", td + "/t.s", "-o", td + "/t.o"], check=True)
        subprocess.run(["llvm-objcopy", "-O", "binary", "-j", ".text", td + "/t.o", td + "/t.bin"],
                       check=True)
        return os.path.getsize(td + "/t.bin")
sz = code_size(out.replace("CODE_BYTES", "0x12345"))
out = out.replace("CODE_BYTES", "%d" % (sz - 64))
print("code bytes", sz)
open(dst, "w").write(out)
print("wrote", dst, "lines", len(out.splitlines()), "WS_END", WS_END, "LDS", LDS_END)
```
